```python
import torch

def _softmax(x, axis=-1):
    return torch.softmax(x, dim=axis)
def _gelu(x):
    return torch.nn.functional.gelu(x, approximate="tanh")
def _silu(x):
    return torch.nn.functional.silu(x)
def _sigmoid(x):
    return torch.sigmoid(x)
def _layernorm(x, axis=-1, eps=1e-5):
    m = x.mean(dim=axis, keepdim=True)
    v = x.var(dim=axis, keepdim=True, unbiased=False)
    return (x - m) / torch.sqrt(v + eps)
def _scatter_add(tgt, idx, src, axis=0):
    return tgt.clone().index_add_(axis, idx, src)
def _segment_sum(src, seg, n):
    out = torch.zeros((n,) + src.shape[1:], dtype=src.dtype)
    return out.index_add_(0, seg, src)
def _pad(x, pw):
    flat = tuple(v for pair in reversed(pw) for v in pair)
    return torch.nn.functional.pad(x, flat)

kernel_name = 'gated_mix__mha_block_cached__dense_activation_silu__decode'

def setup_inputs():

    _w = (lambda a: (lambda t: t.to(torch.bfloat16) if t.is_floating_point() else t)(torch.as_tensor(a)))
    def _A_setup():
        B, Sq, D = 2, 1, 512
        H, Sk, Dh = 32, 8192, 128
        return {
            "x": _w((lambda *s: torch.randn(*s, dtype=torch.bfloat16) * 0.05)(B, Sq, D)),
            "k_cache": _w((lambda *s: torch.randn(*s, dtype=torch.bfloat16) * 3.2)(B, H, Sk, Dh)),
            "v_cache": _w((lambda *s: torch.randn(*s, dtype=torch.bfloat16) * 0.1)(B, H, Sk, Dh)),
            "wq": _w((lambda *s: torch.randn(*s, dtype=torch.bfloat16) * 3.2)(D, H * Dh) * (D ** -0.5)),
            "wo": _w((lambda *s: torch.randn(*s, dtype=torch.bfloat16) * 0.1)(H * Dh, D) * ((H * Dh) ** -0.5)),
        }
    _A_in = _A_setup()

    def _B_setup():
        B, S, D, F = 2, 1, 512, 1792
        return {
            "x": _w((lambda *s: torch.randn(*s, dtype=torch.bfloat16) * 0.05)(B, S, D)),
            "w1": _w((lambda *s: torch.randn(*s, dtype=torch.bfloat16) * 0.05)(D, F) * (D ** -0.5)),
            "w2": _w((lambda *s: torch.randn(*s, dtype=torch.bfloat16) * 0.05)(F, D) * (F ** -0.5)),
        }
    _B_in = _B_setup()

    return {
        "A_x": _A_in["x"],
        "A_k_cache": _A_in["k_cache"],
        "A_v_cache": _A_in["v_cache"],
        "A_wq": _A_in["wq"],
        "A_wo": _A_in["wo"],
        "B_x": _B_in["x"],
        "B_w1": _B_in["w1"],
        "B_w2": _B_in["w2"],
        "gate_w": _w((lambda *s: torch.randn(*s, dtype=torch.bfloat16) * 0.05)(512) * 16.0),
    }

def reference(A_x, A_k_cache, A_v_cache, A_wq, A_wo, B_x, B_w1, B_w2, gate_w):
    def _A_ref(x, k_cache, v_cache, wq, wo):
        B, Sq, D = x.shape
        H, Dh = 32, 128
        q = (lambda x, *d: x.permute(*d))((x @ wq).reshape(B, Sq, H, Dh), 0, 2, 1, 3)
        scores = torch.einsum("bhqd,bhkd->bhqk", q, k_cache) * (Dh ** -0.5)
        p = _softmax(scores, axis=-1)
        o = torch.einsum("bhqk,bhkd->bhqd", p, v_cache)
        return (lambda x, *d: x.permute(*d))(o, 0, 2, 1, 3).reshape(B, Sq, H * Dh) @ wo

    def _B_ref(x, w1, w2):
        h = torch.einsum("bsd,df->bsf", x, w1)
        h = _silu(h)
        out = torch.einsum("bsf,fd->bsd", h, w2)
        return out

    x = A_x
    g = _sigmoid((x * gate_w).sum(-1, keepdims=True))
    a = _A_ref(x, A_k_cache, A_v_cache, A_wq, A_wo)
    b = _B_ref(x, B_w1, B_w2)
    return g * a + (1 - g) * b
```

```python
import sys, math

HEADER = open('gated_mix__mha_block_cached__dense_activation_silu__decode.s.ref').read().split('; Override launch')[0]

NFFN = 56
WS_Y = 0
WS_ML = 512*1024
WS_Z = 1024*1024

LDS_Q = 0
LDS_HP = 2048
LDS_HS = 3072
LDS_ACC = 4096
LDS_ML = 8192
LDS_O = 8448
LDS_TOTAL = 10752

CSCALE = (128 ** -0.5) * math.log2(math.e)
import struct
def f2u(f): return struct.unpack('<I', struct.pack('<f', f))[0]

class E:
    def __init__(self): self.L = []
    def __call__(self, s): self.L.append("    " + s)
    def label(self, s): self.L.append(s + ":")
    def c(self, s): self.L.append("    ; " + s)
    def text(self): return "\n".join(self.L) + "\n"

def srd(e, d, lo, hi, off_sgpr, nbytes):
    if off_sgpr is None:
        e(f"s_mov_b32 s{d}, s{lo}")
        e(f"s_and_b32 s{d+1}, s{hi}, 0xffff")
    else:
        e(f"s_add_u32 s{d}, s{lo}, {off_sgpr}")
        e(f"s_addc_u32 s{d+1}, s{hi}, 0")
        e(f"s_and_b32 s{d+1}, s{d+1}, 0xffff")
    e(f"s_mov_b32 s{d+2}, {nbytes}")
    e(f"s_mov_b32 s{d+3}, 0x00020000")

def swap_add(e, kind, pairs, op="v_add_f32"):
    e("s_nop 1")
    for a, b in pairs:
        e(f"v_permlane{kind}_swap_b32 v{a}, v{b}")
    for a, b in pairs:
        e(f"{op} v{a}, v{a}, v{b}")

def allred_rows(e, v, t0, t1, op):
    for kind in (32, 16):
        e(f"v_mov_b32 v{t0}, v{v}")
        e(f"v_mov_b32 v{t1}, v{v}")
        e("s_nop 1")
        e(f"v_permlane{kind}_swap_b32 v{t0}, v{t1}")
        e(f"{op} v{v}, v{t0}, v{t1}")

def rb(e, d, s):
    e(f"v_cvt_pk_bf16_f32 v{d}, v{s}, v{s}")
    e(f"v_lshlrev_b32 v{d}, 16, v{d}")

DPP = "row_mask:0xf bank_mask:0xf"

def gen_k1(e, D=16):
    e.label("k1_kernel")
    e("s_cmp_ge_u32 s2, 256")
    e("s_cbranch_scc1 K1_end")
    e("s_load_dwordx16 s[16:31], s[0:1], 0")
    e("s_load_dwordx2 s[32:33], s[0:1], 88")
    e("v_lshrrev_b32 v1, 6, v0")
    e("v_and_b32 v0, 63, v0")
    e("v_readfirstlane_b32 s3, v1")
    e("s_and_b32 s4, s2, 63")
    e("s_lshr_b32 s5, s2, 6")
    e("s_mov_b32 s34, 0xffff0000")
    e("s_cmp_ge_u32 s3, 8")
    e("s_cbranch_scc1 K1_aux")
    e.c("main wave: stream K then V")
    e("s_lshl_b32 s6, s4, 21")
    e("s_lshl_b32 s7, s5, 19")
    e("s_add_u32 s6, s6, s7")
    e("s_lshl_b32 s7, s3, 12")
    e("v_lshlrev_b32 v1, 4, v0")
    e("v_add_u32 v1, s7, v1")
    e("s_waitcnt lgkmcnt(0)")
    srd(e, 8, 18, 19, "s6", 512*1024)
    srd(e, 12, 20, 21, "s6", 512*1024)
    RING = 96; SP = 32; ACC = 6; Q = 2
    def issue_group(gi):
        if gi >= 32: return
        srdn = "s[8:11]" if gi < 16 else "s[12:15]"
        R = gi % 16
        so = "0"
        if R:
            e(f"s_mov_b32 s40, {R*32768}")
            so = "s40"
        for u in range(4):
            b = RING + 4 * ((4*gi + u) % D)
            e(f"buffer_load_dwordx4 v[{b}:{b+3}], v1, {srdn}, {so} offen offset:{u*1024} nt")
    NG = D // 4
    for gi in range(NG): issue_group(gi)
    for k in range(8): e(f"v_mov_b32 v{ACC+k}, 0")
    e("v_lshlrev_b32 v14, 5, v0")
    e("v_and_b32 v14, 0x1e0, v14")
    e("s_barrier")
    for a in range(4):
        e(f"ds_read_b128 v[{32+8*a}:{35+8*a}], v14 offset:{LDS_Q + a*512}")
        e(f"ds_read_b128 v[{36+8*a}:{39+8*a}], v14 offset:{LDS_Q + a*512 + 16}")
    e("s_waitcnt lgkmcnt(0)")
    for k in range(8):
        e(f"v_add_f32 v{32+k}, v{32+k}, v{40+k}")
        e(f"v_add_f32 v{48+k}, v{48+k}, v{56+k}")
    for k in range(8):
        e(f"v_add_f32 v{32+k}, v{32+k}, v{48+k}")
    for k in range(4):
        e(f"v_cvt_pk_bf16_f32 v{Q+k}, v{32+2*k}, v{33+2*k}")
    for gi in range(16):
        out = min(D, 128 - 4*gi)
        e(f"s_waitcnt vmcnt({out-4})")
        for d in range(4):
            for u in range(4):
                b = RING + 4 * ((4*gi + u) % D)
                s = SP + 4*gi + u
                e(f"v_dot2_f32_bf16 v{s}, v{b+d}, v{Q+d}, {'0' if d == 0 else 'v%d' % s}")
        issue_group(gi + NG)
        for m in ("quad_perm:[1,0,3,2]", "quad_perm:[2,3,0,1]", "row_half_mirror", "row_mirror"):
            for u in range(4):
                s = SP + 4*gi + u
                e(f"v_add_f32_dpp v{s}, v{s}, v{s} {m} {DPP}")
    e("s_barrier")
    e(f"v_max3_f32 v14, v{SP}, v{SP+1}, v{SP+2}")
    e(f"v_max3_f32 v15, v{SP+3}, v{SP+4}, v{SP+5}")
    k = 6
    while k + 3 < 64:
        e(f"v_max3_f32 v14, v14, v{SP+k}, v{SP+k+1}")
        e(f"v_max3_f32 v15, v15, v{SP+k+2}, v{SP+k+3}")
        k += 4
    e(f"v_max3_f32 v14, v14, v{SP+62}, v{SP+63}")
    e("v_max_f32 v14, v14, v15")
    allred_rows(e, 14, 16, 17, "v_max_f32")
    e(f"s_mov_b32 s41, {f2u(CSCALE):#x}")
    e("v_mul_f32 v14, s41, v14")
    for k in range(64):
        e(f"v_fma_f32 v{SP+k}, v{SP+k}, s41, -v14")
    for k in range(64):
        e(f"v_exp_f32 v{SP+k}, v{SP+k}")
    e("s_nop 0")
    e(f"v_add_f32 v15, v{SP}, v{SP+1}")
    e(f"v_add_f32 v16, v{SP+2}, v{SP+3}")
    e(f"v_add_f32 v17, v{SP+4}, v{SP+5}")
    e(f"v_add_f32 v18, v{SP+6}, v{SP+7}")
    for k in range(8, 64, 4):
        for j in range(4):
            e(f"v_add_f32 v{15+j}, v{15+j}, v{SP+k+j}")
    e("v_add_f32 v15, v15, v16")
    e("v_add_f32 v17, v17, v18")
    e("v_add_f32 v15, v15, v17")
    allred_rows(e, 15, 16, 17, "v_add_f32")
    for gv in range(16):
        gi = 16 + gv
        out = min(D, 128 - 4*gi)
        e(f"s_waitcnt vmcnt({out-4})")
        for u in range(4):
            b = RING + 4 * ((4*gi + u) % D)
            p = SP + 4*gv + u
            for d in range(4):
                t = 16 + 2*d + 8*(u & 1)
                e(f"v_lshlrev_b32 v{t}, 16, v{b+d}")
                e(f"v_and_b32 v{t+1}, s34, v{b+d}")
            for d in range(4):
                t = 16 + 2*d + 8*(u & 1)
                e(f"v_fmac_f32 v{ACC+2*d}, v{p}, v{t}")
                e(f"v_fmac_f32 v{ACC+2*d+1}, v{p}, v{t+1}")
        issue_group(gi + NG)
    swap_add(e, 32, [(ACC+k, ACC+4+k) for k in range(4)])
    swap_add(e, 16, [(ACC, ACC+2), (ACC+1, ACC+3)])
    e("v_and_b32 v16, 15, v0")
    e("v_lshrrev_b32 v17, 4, v0")
    e("v_lshlrev_b32 v16, 5, v16")
    e("v_lshlrev_b32 v17, 3, v17")
    e("v_add_u32 v16, v16, v17")
    e("s_lshl_b32 s7, s3, 9")
    e("v_add_u32 v16, s7, v16")
    e(f"ds_write_b64 v16, v[{ACC}:{ACC+1}] offset:{LDS_ACC}")
    e("s_lshl_b32 s7, s3, 3")
    e("v_mov_b32 v16, s7")
    e(f"ds_write_b64 v16, v[14:15] offset:{LDS_ML}")
    e("s_waitcnt lgkmcnt(0)")
    e("s_barrier")
    e("s_endpgm")
    e.label("K1_aux")
    e("s_sub_u32 s3, s3, 8")
    e("s_and_b32 s6, s4, 31")
    e("s_lshr_b32 s7, s4, 5")
    e("v_lshrrev_b32 v10, 4, v0")
    e("v_and_b32 v11, 15, v0")
    e("v_lshlrev_b32 v11, 4, v11")
    e("v_lshlrev_b32 v1, 18, v10")
    e("v_add_u32 v1, v1, v11")
    e("s_lshl_b32 s35, s3, 20")
    e("v_add_u32 v1, s35, v1")
    e("v_lshlrev_b32 v12, 6, v10")
    e("s_lshl_b32 s35, s3, 8")
    e("s_lshl_b32 s36, s7, 10")
    e("s_add_u32 s35, s35, s36")
    e("v_add_u32 v12, s35, v12")
    e("s_lshl_b32 s35, s6, 8")
    e("s_sub_u32 s36, 0x400000, s35")
    e("s_waitcnt lgkmcnt(0)")
    srd(e, 8, 22, 23, "s35", "s36")
    srd(e, 12, 16, 17, None, 2048)
    for k in range(4):
        e(f"buffer_load_dwordx4 v[{16+4*k}:{19+4*k}], v12, s[12:15], 0 offen offset:{16*k}")
    for t in range(32):
        so = "0"
        if t:
            e(f"s_mov_b32 s40, {t*8192}")
            so = "s40"
        e(f"buffer_load_dwordx4 v[{32+4*t}:{35+4*t}], v1, s[8:11], {so} offen")
    for k in range(8): e(f"v_mov_b32 v{2+k}, 0")
    for t in range(32):
        e(f"s_waitcnt vmcnt({31-t})")
        if t % 2 == 0: e(f"v_lshlrev_b32 v12, 16, v{16+t//2}")
        else:          e(f"v_and_b32 v12, s34, v{16+t//2}")
        for d in range(4):
            e(f"v_lshlrev_b32 v13, 16, v{32+4*t+d}")
            e(f"v_and_b32 v14, s34, v{32+4*t+d}")
            e(f"v_fmac_f32 v{2+2*d}, v12, v13")
            e(f"v_fmac_f32 v{3+2*d}, v12, v14")
    swap_add(e, 32, [(2+k, 6+k) for k in range(4)])
    swap_add(e, 16, [(2, 4), (3, 5)])
    e("v_lshlrev_b32 v12, 1, v11")
    e("v_lshlrev_b32 v13, 3, v10")
    e("v_add_u32 v12, v12, v13")
    e("s_lshl_b32 s35, s3, 9")
    e("v_add_u32 v15, s35, v12")
    e(f"ds_write_b64 v15, v[2:3] offset:{LDS_Q}")
    e("s_waitcnt lgkmcnt(0)")
    e("s_barrier")
    e(f"s_cmp_ge_u32 s2, {NFFN}")
    e("s_cbranch_scc1 K1_noffn")
    e.c("FFN phase 1")
    e("s_lshl_b32 s35, s2, 6")
    e(f"s_sub_u32 s36, {512*3584}, s35")
    srd(e, 8, 28, 29, "s35", "s36")
    e("s_lshl_b32 s35, s2, 15")
    srd(e, 36, 30, 31, "s35", 32768)
    e("v_lshrrev_b32 v26, 2, v0")
    e("v_and_b32 v27, 3, v0")
    e("v_lshlrev_b32 v28, 3, v26")
    e("s_lshl_b32 s35, s3, 7")
    e("v_add_u32 v28, s35, v28")
    e("s_movk_i32 s35, 3584")
    e("v_mul_lo_u32 v29, v28, s35")
    e("v_lshlrev_b32 v30, 4, v27")
    e("v_add_u32 v29, v29, v30")
    e("v_lshlrev_b32 v28, 1, v28")
    e("buffer_load_dwordx4 v[18:21], v28, s[12:15], 0 offen")
    e("buffer_load_dwordx4 v[22:25], v28, s[12:15], 0 offen offset:1024")
    for t in range(8):
        so = "0"
        if t:
            e(f"s_mov_b32 s40, {t*3584}")
            so = "s40"
        e(f"buffer_load_dwordx4 v[{32+4*t}:{35+4*t}], v29, s[8:11], {so} offen")
    e("v_lshlrev_b32 v29, 13, v10")
    e("v_add_u32 v29, v29, v11")
    e("s_lshl_b32 s35, s3, 8")
    e("v_add_u32 v29, s35, v29")
    e("s_movk_i32 s40, 4096")
    for t in range(8):
        so = "0" if t < 4 else "s40"
        e(f"buffer_load_dwordx4 v[{64+4*t}:{67+4*t}], v29, s[36:39], {so} offen offset:{(t%4)*1024}")
    for k in range(16): e(f"v_mov_b32 v{96+k}, 0")
    for t in range(8):
        e(f"s_waitcnt vmcnt({15-t})")
        for b in range(2):
            if t % 2 == 0: e(f"v_lshlrev_b32 v{28+b}, 16, v{18+4*b+t//2}")
            else:          e(f"v_and_b32 v{28+b}, s34, v{18+4*b+t//2}")
        for d in range(4):
            e(f"v_lshlrev_b32 v30, 16, v{32+4*t+d}")
            e(f"v_and_b32 v31, s34, v{32+4*t+d}")
            for b in range(2):
                e(f"v_fmac_f32 v{96+8*b+2*d}, v{28+b}, v30")
                e(f"v_fmac_f32 v{97+8*b+2*d}, v{28+b}, v31")
    swap_add(e, 32, [(96+k, 104+k) for k in range(8)])
    swap_add(e, 16, [(96+k, 100+k) for k in range(4)])
    e("s_nop 1")
    for m in ("row_ror:4", "row_ror:8"):
        for k in range(4):
            e(f"v_add_f32_dpp v{96+k}, v{96+k}, v{96+k} {m} {DPP}")
    e("v_lshrrev_b32 v28, 5, v0")
    e("v_lshlrev_b32 v28, 7, v28")
    e("v_lshlrev_b32 v30, 5, v27")
    e("v_add_u32 v28, v28, v30")
    e("v_and_b32 v30, 16, v0")
    e("v_add_u32 v28, v28, v30")
    e("s_lshl_b32 s35, s3, 8")
    e("v_add_u32 v28, s35, v28")
    e(f"ds_write_b128 v28, v[96:99] offset:{LDS_HP}")
    e("s_waitcnt lgkmcnt(0)")
    e("s_barrier")
    e.c("FFN phase 2")
    e("v_lshlrev_b32 v28, 2, v0")
    for a in range(4):
        e(f"ds_read_b32 v{96+a}, v28 offset:{LDS_HP + a*256}")
    e("s_waitcnt lgkmcnt(0)")
    e("v_add_f32 v96, v96, v97")
    e("v_add_f32 v98, v98, v99")
    e("v_add_f32 v96, v96, v98")
    rb(e, 96, 96)
    e(f"v_mul_f32 v97, {f2u(-math.log2(math.e)):#x}, v96")
    e("v_exp_f32 v97, v97")
    e("s_nop 0")
    e("v_add_f32 v97, 1.0, v97")
    e("v_rcp_f32 v97, v97")
    e("s_nop 0")
    e("v_mul_f32 v96, v96, v97")
    rb(e, 96, 96)
    e("s_lshl_b32 s35, s3, 8")
    e("v_add_u32 v28, s35, v28")
    e(f"ds_write_b32 v28, v96 offset:{LDS_HS}")
    e("v_lshlrev_b32 v28, 5, v10")
    e("v_add_u32 v28, s35, v28")
    e("s_waitcnt lgkmcnt(0)")
    for b in range(2):
        e(f"ds_read_b128 v[{96+8*b}:{99+8*b}], v28 offset:{LDS_HS + b*128}")
        e(f"ds_read_b128 v[{100+8*b}:{103+8*b}], v28 offset:{LDS_HS + b*128 + 16}")
    for k in range(16): e(f"v_mov_b32 v{112+k}, 0")
    e("s_waitcnt vmcnt(0) lgkmcnt(0)")
    for t in range(8):
        for d in range(4):
            e(f"v_lshlrev_b32 v30, 16, v{64+4*t+d}")
            e(f"v_and_b32 v31, s34, v{64+4*t+d}")
            for b in range(2):
                e(f"v_fmac_f32 v{112+8*b+2*d}, v{96+8*b+t}, v30")
                e(f"v_fmac_f32 v{113+8*b+2*d}, v{96+8*b+t}, v31")
    swap_add(e, 32, [(112+k, 120+k) for k in range(8)])
    swap_add(e, 16, [(112+k, 116+k) for k in range(4)])
    e("v_lshrrev_b32 v28, 5, v0")
    e("v_lshlrev_b32 v28, 11, v28")
    e("v_lshlrev_b32 v30, 1, v11")
    e("v_add_u32 v28, v28, v30")
    e("v_and_b32 v30, 16, v0")
    e("v_add_u32 v28, v28, v30")
    e("s_lshl_b32 s35, s3, 9")
    e("s_lshl_b32 s40, s2, 12")
    e("s_add_u32 s35, s35, s40")
    e("v_add_u32 v28, s35, v28")
    e(f"s_mov_b32 s35, {WS_Z}")
    srd(e, 36, 32, 33, "s35", NFFN*4096)
    e("buffer_store_dwordx4 v[112:115], v28, s[36:39], 0 offen")
    e("s_branch K1_wo")
    e.label("K1_noffn")
    e("s_barrier")
    e.label("K1_wo")
    e("s_lshl_b32 s35, s6, 17")
    srd(e, 8, 24, 25, "s35", 131072)
    e("v_lshlrev_b32 v1, 15, v10")
    e("v_add_u32 v1, v1, v11")
    e("s_lshl_b32 s35, s3, 8")
    e("v_add_u32 v1, s35, v1")
    e("s_nop 1")
    for t in range(32):
        if t % 4 == 0 and t:
            e(f"s_mov_b32 s40, {t*1024}")
        so = "0" if t < 4 else "s40"
        e(f"buffer_load_dwordx4 v[{32+4*t}:{35+4*t}], v1, s[8:11], {so} offen offset:{(t%4)*1024}")
    srd(e, 36, 32, 33, None, WS_ML + 2048)
    e("v_mov_b32 v12, 0")
    e("v_lshlrev_b32 v13, 3, v0")
    e("s_lshl_b32 s35, s3, 9")
    e("v_add_u32 v14, s35, v13")
    e("v_lshlrev_b32 v1, 7, v10")
    e("v_add_u32 v1, s35, v1")
    for k in range(8): e(f"v_mov_b32 v{2+k}, 0")
    e("s_barrier")
    for k in range(4):
        e(f"ds_read_b128 v[{16+4*k}:{19+4*k}], v12 offset:{LDS_ML + 16*k}")
    e("s_waitcnt lgkmcnt(0)")
    e("v_max3_f32 v12, v16, v18, v20")
    e("v_max3_f32 v12, v12, v22, v24")
    e("v_max3_f32 v12, v12, v26, v28")
    e("v_max_f32 v12, v12, v30")
    for w in range(8):
        e(f"v_sub_f32 v{16+2*w}, v{16+2*w}, v12")
    for w in range(8):
        e(f"v_exp_f32 v{16+2*w}, v{16+2*w}")
    e("s_nop 0")
    e("v_mul_f32 v11, v16, v17")
    for w in range(1, 8):
        e(f"v_fmac_f32 v11, v{16+2*w}, v{17+2*w}")
    e("v_mov_b32 v8, 0")
    e("v_mov_b32 v9, 0")
    T = [160, 162, 164, 166]
    for half in range(2):
        for k in range(4):
            w = 4*half + k
            e(f"ds_read_b64 v[{T[k]}:{T[k]+1}], v13 offset:{LDS_ACC + w*512}")
        e("s_waitcnt lgkmcnt(0)")
        for k in range(4):
            w = 4*half + k
            e(f"v_fmac_f32 v8, v{16+2*w}, v{T[k]}")
            e(f"v_fmac_f32 v9, v{16+2*w}, v{T[k]+1}")
    e(f"ds_write_b64 v14, v[8:9] offset:{LDS_O}")
    e("v_mov_b32 v8, 0")
    e("v_mov_b32 v9, 0")
    e("v_mov_b32 v13, v11")
    e("s_waitcnt lgkmcnt(0)")
    for c in range(2):
        e(f"ds_read_b128 v[{16+8*c}:{19+8*c}], v1 offset:{LDS_O + 32*c}")
        e(f"ds_read_b128 v[{20+8*c}:{23+8*c}], v1 offset:{LDS_O + 32*c + 16}")
    e("s_waitcnt vmcnt(0)")
    for c in range(4):
        e(f"s_waitcnt lgkmcnt({2 if c < 3 else 0})")
        ob = 16 + 8*(c & 1)
        for tt in range(8):
            t = 8*c + tt
            for d in range(4):
                e(f"v_lshlrev_b32 v{160+2*(d&1)}, 16, v{32+4*t+d}")
                e(f"v_and_b32 v{161+2*(d&1)}, s34, v{32+4*t+d}")
                e(f"v_fmac_f32 v{2+2*d}, v{ob+tt}, v{160+2*(d&1)}")
                e(f"v_fmac_f32 v{3+2*d}, v{ob+tt}, v{161+2*(d&1)}")
        if c + 2 < 4:
            e(f"ds_read_b128 v[{ob}:{ob+3}], v1 offset:{LDS_O + 32*(c+2)}")
            e(f"ds_read_b128 v[{ob+4}:{ob+7}], v1 offset:{LDS_O + 32*(c+2) + 16}")
    swap_add(e, 32, [(2+k, 6+k) for k in range(4)])
    swap_add(e, 16, [(2, 4), (3, 5)])
    e("s_lshl_b32 s35, s2, 11")
    e(f"buffer_store_dwordx2 v[2:3], v15, s[36:39], s35 offen")
    e("s_cmp_lg_u32 s3, 0")
    e("s_cbranch_scc1 K1_end")
    e("s_lshl_b32 s35, s4, 2")
    e("s_add_u32 s35, s35, s5")
    e("s_lshl_b32 s35, s35, 3")
    e(f"s_add_u32 s35, s35, {WS_ML}")
    e("v_mov_b32 v1, s35")
    e("v_cmp_eq_u32 vcc, 0, v0")
    e("s_and_saveexec_b64 s[42:43], vcc")
    e("buffer_store_dwordx2 v[12:13], v1, s[36:39], 0 offen")
    e.label("K1_end")
    e("s_endpgm")

def gen_k2(e):
    e.label("k2_kernel")
    e("s_cmp_ge_u32 s2, 64")
    e("s_cbranch_scc1 K2_end")
    e("s_load_dwordx2 s[16:17], s[0:1], 0")
    e("s_load_dwordx4 s[20:23], s[0:1], 64")
    e("s_load_dwordx2 s[32:33], s[0:1], 88")
    e("s_lshr_b32 s4, s2, 5")
    e("s_and_b32 s5, s2, 31")
    e("s_mov_b32 s34, 0xffff0000")
    e("v_and_b32 v1, 3, v0")
    e("v_lshlrev_b32 v1, 4, v1")
    e("s_lshl_b32 s6, s5, 6")
    e("v_add_u32 v1, s6, v1")
    e("v_lshrrev_b32 v2, 3, v0")
    e("s_lshl_b32 s6, s4, 5")
    e("v_add_u32 v2, s6, v2")
    e("v_bfe_u32 v3, v0, 2, 1")
    e("v_lshlrev_b32 v4, 18, v3")
    e("v_lshlrev_b32 v5, 11, v2")
    e("v_add3_u32 v4, v4, v5, v1")
    e("v_lshlrev_b32 v5, 5, v2")
    e("v_lshrrev_b32 v6, 2, v0")
    e("v_lshlrev_b32 v6, 12, v6")
    e("s_lshl_b32 s6, s4, 11")
    e("v_add3_u32 v6, v6, v1, s6")
    e("v_lshlrev_b32 v7, 2, v0")
    e("s_lshl_b32 s6, s4, 10")
    e("s_waitcnt lgkmcnt(0)")
    srd(e, 8, 32, 33, None, WS_ML + 2048)
    e(f"s_mov_b32 s35, {WS_Z}")
    srd(e, 12, 32, 33, "s35", NFFN*4096)
    srd(e, 24, 16, 17, None, 2048)
    srd(e, 28, 20, 21, None, 1024)
    srd(e, 36, 22, 23, None, 2048)
    e(f"s_mov_b32 s40, {WS_ML}")
    e("s_mov_b32 s41, 131072")
    e("buffer_load_dwordx4 v[8:11], v5, s[8:11], s40 offen")
    e("buffer_load_dwordx4 v[12:15], v5, s[8:11], s40 offen offset:16")
    e("buffer_load_dword v28, v7, s[24:27], s6 offen")
    e("buffer_load_dword v29, v7, s[28:31], 0 offen")
    e("buffer_load_dwordx4 v[16:19], v4, s[8:11], 0 offen")
    e("buffer_load_dwordx4 v[20:23], v4, s[8:11], s41 offen")
    e("buffer_load_dwordx4 v[24:27], v6, s[12:15], 0 offen")
    e("v_cmp_eq_u32 vcc, 0, v3")
    e("s_waitcnt vmcnt(5)")
    e("v_max3_f32 v30, v8, v10, v12")
    e("v_max_f32 v30, v30, v14")
    for k in range(4):
        e(f"v_sub_f32 v{8+2*k}, v{8+2*k}, v30")
    for k in range(4):
        e(f"v_exp_f32 v{8+2*k}, v{8+2*k}")
    e("s_nop 0")
    e("v_mul_f32 v30, v8, v9")
    e("v_fmac_f32 v30, v10, v11")
    e("v_fmac_f32 v30, v12, v13")
    e("v_fmac_f32 v30, v14, v15")
    e("v_rcp_f32 v30, v30")
    e("v_cndmask_b32 v8, v12, v8, vcc")
    e("v_cndmask_b32 v10, v14, v10, vcc")
    e("v_mul_f32 v8, v8, v30")
    e("v_mul_f32 v10, v10, v30")
    e("s_waitcnt vmcnt(3)")
    e("v_lshlrev_b32 v31, 16, v28")
    e("v_lshlrev_b32 v32, 16, v29")
    e("v_and_b32 v28, s34, v28")
    e("v_and_b32 v29, s34, v29")
    e("v_mul_f32 v31, v31, v32")
    e("v_mul_f32 v28, v28, v29")
    rb(e, 31, 31)
    rb(e, 28, 28)
    e("v_add_f32 v28, v28, v31")
    e("s_waitcnt vmcnt(1)")
    for k in range(4):
        e(f"v_mul_f32 v{16+k}, v8, v{16+k}")
    for k in range(4):
        e(f"v_fmac_f32 v{16+k}, v10, v{20+k}")
    e("s_waitcnt vmcnt(0)")
    e("s_nop 1")
    vals = [16, 17, 18, 19, 24, 25, 26, 27, 28]
    for m in ("row_ror:4", "row_ror:8"):
        for v in vals:
            e(f"v_add_f32_dpp v{v}, v{v}, v{v} {m} {DPP}")
    for m in ("quad_perm:[1,0,3,2]", "quad_perm:[2,3,0,1]"):
        e("s_nop 1")
        e(f"v_add_f32_dpp v28, v28, v28 {m} {DPP}")
    swap_add(e, 32, [(16+k, 24+k) for k in range(4)])
    swap_add(e, 16, [(16, 18), (17, 19)])
    allred_rows(e, 28, 30, 31, "v_add_f32")
    e("v_and_b32 v1, 63, v0")
    e("v_lshrrev_b32 v2, 6, v0")
    e("v_lshlrev_b32 v3, 7, v2")
    e("v_lshrrev_b32 v4, 5, v1")
    e("v_lshlrev_b32 v4, 6, v4")
    e("v_and_b32 v5, 3, v0")
    e("v_lshlrev_b32 v5, 4, v5")
    e("v_bfe_u32 v6, v0, 4, 1")
    e("v_lshlrev_b32 v6, 3, v6")
    e("v_add3_u32 v3, v3, v4, v5")
    e("v_add_u32 v3, v3, v6")
    e("ds_write_b64 v3, v[16:17]")
    e("v_lshlrev_b32 v2, 2, v2")
    e("ds_write_b32 v2, v28 offset:512")
    e("s_waitcnt lgkmcnt(0)")
    e("s_barrier")
    e("v_cmp_gt_u32 vcc, 16, v0")
    e("s_and_saveexec_b64 s[42:43], vcc")
    e("s_cbranch_execz K2_end")
    e("v_lshlrev_b32 v1, 2, v0")
    e("v_mov_b32 v2, 0")
    for w in range(4):
        e(f"ds_read_b32 v{8+w}, v1 offset:{w*128}")
        e(f"ds_read_b32 v{12+w}, v1 offset:{w*128+64}")
    e("ds_read_b128 v[16:19], v2 offset:512")
    e("s_waitcnt lgkmcnt(0)")
    e("v_add_f32 v8, v8, v9")
    e("v_add_f32 v10, v10, v11")
    e("v_add_f32 v12, v12, v13")
    e("v_add_f32 v14, v14, v15")
    e("v_add_f32 v16, v16, v17")
    e("v_add_f32 v18, v18, v19")
    e("v_add_f32 v8, v8, v10")
    e("v_add_f32 v12, v12, v14")
    e("v_add_f32 v16, v16, v18")
    rb(e, 8, 8)
    rb(e, 12, 12)
    rb(e, 16, 16)
    e(f"v_mul_f32 v17, {f2u(-math.log2(math.e)):#x}, v16")
    e("v_exp_f32 v17, v17")
    e("s_nop 0")
    e("v_add_f32 v17, 1.0, v17")
    e("v_rcp_f32 v17, v17")
    e("s_nop 0")
    rb(e, 17, 17)
    e("v_sub_f32 v18, 1.0, v17")
    rb(e, 18, 18)
    e("v_mul_f32 v8, v17, v8")
    e("v_mul_f32 v12, v18, v12")
    rb(e, 8, 8)
    rb(e, 12, 12)
    e("v_add_f32 v8, v8, v12")
    e("v_cvt_pk_bf16_f32 v8, v8, v8")
    e("s_lshl_b32 s6, s4, 10")
    e("s_lshl_b32 s7, s5, 5")
    e("s_add_u32 s6, s6, s7")
    e("v_lshlrev_b32 v1, 1, v0")
    e("buffer_store_short v8, v1, s[36:39], s6 offen")
    e.label("K2_end")
    e("s_endpgm")

def kd(name, vg, sg):
    return f""".amdhsa_kernel {name}
  .amdhsa_next_free_vgpr {vg}
  .amdhsa_next_free_sgpr {sg}
  .amdhsa_accum_offset {(vg+3)//4*4}
  .amdhsa_group_segment_fixed_size 0
  .amdhsa_kernarg_size 96
  .amdhsa_user_sgpr_count 2
  .amdhsa_user_sgpr_kernarg_segment_ptr 1
  .amdhsa_system_sgpr_workgroup_id_x 1
.end_amdhsa_kernel
"""

def gen():
    out = HEADER
    out += f"; @launch kernel=k1_kernel grid=(256,1,1) block=(768,1,1) lds={LDS_TOTAL}\n"
    out += "; @launch kernel=k2_kernel grid=(64,1,1) block=(256,1,1) lds=1024\n"
    out += '.amdgcn_target "amdgcn-amd-amdhsa--gfx950"\n.text\n'
    e = E(); gen_k1(e)
    out += ".globl k1_kernel\n.p2align 8\n.type k1_kernel,@function\n" + e.text()
    e = E(); gen_k2(e)
    out += ".globl k2_kernel\n.p2align 8\n.type k2_kernel,@function\n" + e.text()
    out += '.section .rodata,"a"\n.p2align 6\n' + kd("k1_kernel", 168, 48) + ".p2align 6\n" + kd("k2_kernel", 40, 48)
    return out

if __name__ == "__main__":
    path = sys.argv[1] if len(sys.argv) > 1 else "gated_mix__mha_block_cached__dense_activation_silu__decode.s"
    open(path, "w").write(gen())
```
